```python
import torch

def _softmax(x, axis=-1):
    return torch.softmax(x, dim=axis)
def _gelu(x):
    return torch.nn.functional.gelu(x, approximate="tanh")
def _silu(x):
    return torch.nn.functional.silu(x)
def _sigmoid(x):
    return torch.sigmoid(x)
def _layernorm(x, axis=-1, eps=1e-5):
    m = x.mean(dim=axis, keepdim=True)
    v = x.var(dim=axis, keepdim=True, unbiased=False)
    return (x - m) / torch.sqrt(v + eps)
def _scatter_add(tgt, idx, src, axis=0):
    return tgt.clone().index_add_(axis, idx, src)
def _segment_sum(src, seg, n):
    out = torch.zeros((n,) + src.shape[1:], dtype=src.dtype)
    return out.index_add_(0, seg, src)
def _pad(x, pw):
    flat = tuple(v for pair in reversed(pw) for v in pair)
    return torch.nn.functional.pad(x, flat)

kernel_name = 'standalone__mixer_token_mlp__prompt'

def setup_inputs():

    _w = (lambda a: (lambda t: t.to(torch.bfloat16) if t.is_floating_point() else t)(torch.as_tensor(a)))
    B, S, D, F = 1, 2048, 512, 1792
    return {
        "x": _w((lambda *s: torch.randn(*s, dtype=torch.bfloat16) * 0.05)(B, S, D)),
        "w1": _w((lambda *s: torch.randn(*s, dtype=torch.bfloat16) * 0.2)(S, F) * (S ** -0.5)),
        "b1": _w((lambda *s: torch.randn(*s, dtype=torch.bfloat16) * 3.2)(F) * 0.02),
        "w2": _w((lambda *s: torch.randn(*s, dtype=torch.bfloat16) * 0.05)(F, S) * (F ** -0.5)),
        "b2": _w((lambda *s: torch.randn(*s, dtype=torch.bfloat16) * 0.1)(S) * 0.02),
    }

def reference(x, w1, b1, w2, b2):
    B, S, D = x.shape
    h = _layernorm(x, axis=-1)
    u = torch.einsum("bsd,sf->bdf", h, w1) + b1
    u = _gelu(u)
    y = torch.einsum("bdf,fs->bds", u, w2) + b2
    return (lambda x, *d: x.permute(*d))(y, 0, 2, 1)
```

```python
class Asm:
    def __init__(self):
        self.lines = []
        self.vm = []
        self.lg = []
        self.nlab = 0

    def e(self, s):
        self.lines.append("    " + s)

    def c(self, s):
        self.lines.append("    ; " + s)

    def label(self, name):
        self.lines.append(name + ":")

    def newlabel(self, stem):
        self.nlab += 1
        return "L_%s_%d" % (stem, self.nlab)

    def raw(self, s):
        self.lines.append(s)

    def vmem(self, s, tag=None):
        self.e(s)
        self.vm.append(tag)
        assert len(self.vm) <= 63, "too many vmem ops outstanding"

    def lds(self, s, tag=None):
        self.e(s)
        self.lg.append(tag)

    def _need(self, q, tags):
        last = -1
        for i, t in enumerate(q):
            if t in tags:
                last = i
        if last < 0:
            return None
        return len(q) - 1 - last

    def wait(self, vm=(), lg=()):
        if not isinstance(vm, (list, tuple, set)):
            vm = [vm]
        if not isinstance(lg, (list, tuple, set)):
            lg = [lg]
        parts = []
        n = self._need(self.vm, set(vm))
        if n is not None:
            parts.append("vmcnt(%d)" % n)
            self.vm = self.vm[len(self.vm) - n:] if n else []
        n = self._need(self.lg, set(lg))
        if n is not None:
            n = min(n, 15)
            parts.append("lgkmcnt(%d)" % n)
            self.lg = self.lg[len(self.lg) - n:] if n else []
        if parts:
            self.e("s_waitcnt " + " ".join(parts))

    def wait_all(self, vm=True, lg=True):
        parts = []
        if vm:
            parts.append("vmcnt(0)")
            self.vm = []
        if lg:
            parts.append("lgkmcnt(0)")
            self.lg = []
        self.e("s_waitcnt " + " ".join(parts))

    def text(self):
        return "\n".join(self.lines) + "\n"


def vr(b, n=1):
    return "v%d" % b if n == 1 else "v[%d:%d]" % (b, b + n - 1)


def ar(b, n=1):
    return "a%d" % b if n == 1 else "a[%d:%d]" % (b, b + n - 1)


def sr(b, n=1):
    return "s%d" % b if n == 1 else "s[%d:%d]" % (b, b + n - 1)


def kernel_desc(name, vgpr, accum, sgpr=102):
    return """.p2align 6
.amdhsa_kernel %s
  .amdhsa_next_free_vgpr %d
  .amdhsa_next_free_sgpr %d
  .amdhsa_accum_offset %d
  .amdhsa_group_segment_fixed_size 0
  .amdhsa_kernarg_size 64
  .amdhsa_user_sgpr_count 2
  .amdhsa_user_sgpr_kernarg_segment_ptr 1
  .amdhsa_system_sgpr_workgroup_id_x 1
.end_amdhsa_kernel
""" % (name, vgpr, sgpr, accum)


HEADER = """; Kernarg layout for this problem (64 bytes, ptrs only, base s[0:1]):
"""
```

```python
import sys, struct
from asmlib import *

S, D, F = 2048, 512, 1792
NAME = "standalone__mixer_token_mlp__prompt"


def f32(x):
    return "0x%08x" % struct.unpack("<I", struct.pack("<f", x))[0]


H_OFF = 0
U_OFF = 2 << 20
H_BYTES = S * D * 2
U_BYTES = F * D * 2

sX, sW1, sB1, sW2, sB2, sOUT, sDBG, sWS = 8, 10, 12, 14, 16, 18, 20, 22
RW, RB, RO, RBI = 24, 28, 32, 36
sWAVE, sTA, sTB, sSW, sSB, sLW, sT0, sT1, sT2, sT3, sSO = 40, 41, 42, 43, 44, 45, 46, 47, 48, 49, 50
sC0, sC1 = 52, 53

RING = 14
LDS_RED = 0
LDS_W = 49152
LDS_TOTAL = 163840


def srd(a, r, base, off, nbytes):
    if off:
        a.e("s_add_u32 s%d, s%d, 0x%x" % (r, base, off))
        a.e("s_addc_u32 s%d, s%d, 0" % (r + 1, base + 1))
    else:
        a.e("s_mov_b32 s%d, s%d" % (r, base))
        a.e("s_mov_b32 s%d, s%d" % (r + 1, base + 1))
    a.e("s_mov_b32 s%d, 0x%x" % (r + 2, nbytes))
    a.e("s_mov_b32 s%d, 0x20000" % (r + 3))


def dpp_reduce2(a, r0, r1):
    steps = ["row_shr:1 row_mask:0xf", "row_shr:2 row_mask:0xf", "row_shr:4 row_mask:0xf",
             "row_shr:8 row_mask:0xf", "row_bcast:15 row_mask:0xa", "row_bcast:31 row_mask:0xc"]
    a.e("s_nop 1")
    for i, st in enumerate(steps):
        a.e("v_add_f32_dpp v%d, v%d, v%d %s bank_mask:0xf" % (r0, r0, r0, st))
        a.e("v_add_f32_dpp v%d, v%d, v%d %s bank_mask:0xf" % (r1, r1, r1, st))
        if i != len(steps) - 1:
            a.e("s_nop 0")


def ln_body(a):
    P = lambda c: 16 + 2 * c
    a.e("s_mov_b32 s4, 0xffff0000")
    a.e("v_lshlrev_b32 v12, 5, v0")
    a.e("v_lshrrev_b32 v13, 6, v0")
    a.e("v_lshlrev_b32 v13, 9, v13")
    a.e("v_and_b32 v14, 63, v0")
    a.e("v_lshl_add_u32 v13, v14, 2, v13")
    a.wait(vm=["x0", "x1"])
    for i in range(4):
        a.e("v_lshlrev_b32 v%d, 16, v%d" % (P(2 * i), 4 + i))
        a.e("v_lshlrev_b32 v%d, 16, v%d" % (P(2 * i) + 1, 8 + i))
        a.e("v_and_b32 v%d, s4, v%d" % (P(2 * i + 1), 4 + i))
        a.e("v_and_b32 v%d, s4, v%d" % (P(2 * i + 1) + 1, 8 + i))
    pk = lambda r: vr(r, 2)
    for i in range(4):
        a.e("v_pk_add_f32 %s, %s, %s" % (pk(32 + 2 * i), pk(P(2 * i)), pk(P(2 * i + 1))))
    a.e("v_pk_add_f32 %s, %s, %s" % (pk(32), pk(32), pk(34)))
    a.e("v_pk_add_f32 %s, %s, %s" % (pk(36), pk(36), pk(38)))
    a.e("v_pk_add_f32 %s, %s, %s" % (pk(32), pk(32), pk(36)))
    dpp_reduce2(a, 32, 33)
    a.e("v_mul_f32 v32, %s, v32" % f32(1.0 / D))
    a.e("v_mul_f32 v33, %s, v33" % f32(1.0 / D))
    a.e("s_nop 0")
    a.e("v_readlane_b32 s4, v32, 63")
    a.e("v_readlane_b32 s5, v33, 63")
    a.e("s_nop 1")
    for c in range(8):
        a.e("v_pk_add_f32 %s, %s, s[4:5] neg_lo:[0,1] neg_hi:[0,1]" % (pk(P(c)), pk(P(c))))
    a.e("v_pk_mul_f32 %s, %s, %s" % (pk(32), pk(P(0)), pk(P(0))))
    a.e("v_pk_mul_f32 %s, %s, %s" % (pk(34), pk(P(1)), pk(P(1))))
    for c in range(2, 8):
        t = 32 + 2 * (c & 1)
        a.e("v_pk_fma_f32 %s, %s, %s, %s" % (pk(t), pk(P(c)), pk(P(c)), pk(t)))
    a.e("v_pk_add_f32 %s, %s, %s" % (pk(32), pk(32), pk(34)))
    dpp_reduce2(a, 32, 33)
    a.e("v_mul_f32 v32, %s, v32" % f32(1.0 / D))
    a.e("v_mul_f32 v33, %s, v33" % f32(1.0 / D))
    a.e("v_add_f32 v32, %s, v32" % f32(1e-5))
    a.e("v_add_f32 v33, %s, v33" % f32(1e-5))
    a.e("v_rsq_f32 v32, v32")
    a.e("v_rsq_f32 v33, v33")
    a.e("s_nop 0")
    a.e("v_readlane_b32 s6, v32, 63")
    a.e("v_readlane_b32 s7, v33, 63")
    a.e("s_nop 1")
    for c in range(8):
        a.e("v_pk_mul_f32 %s, %s, s[6:7]" % (pk(P(c)), pk(P(c))))
    for c in range(8):
        a.e("v_cvt_pk_bf16_f32 v%d, v%d, v%d" % (4 + c, P(c), P(c) + 1))
    a.lds("ds_write_b128 v12, v[4:7]", "lw")
    a.lds("ds_write_b128 v12, v[8:11] offset:16", "lw")
    a.wait(lg="lw")
    a.e("s_barrier")
    a.lds("ds_read2st64_b32 v[16:17], v13 offset0:0 offset1:8", "r0")
    a.lds("ds_read2st64_b32 v[18:19], v13 offset0:16 offset1:24", "r0")
    a.lds("ds_read2st64_b32 v[20:21], v13 offset0:1 offset1:9", "r1")
    a.lds("ds_read2st64_b32 v[22:23], v13 offset0:17 offset1:25", "r1")


def gen_ln(a):
    a.raw(".p2align 8")
    a.raw(".type ln_kernel,@function")
    a.label("ln_kernel")
    a.e("s_cmp_ge_u32 s2, 256")
    a.e("s_cbranch_scc1 L_ln_end")
    a.e("s_load_dwordx2 s[8:9], s[0:1], 0")
    a.e("s_load_dwordx2 s[22:23], s[0:1], 56")
    a.e("v_and_b32 v1, 63, v0")
    a.e("v_lshrrev_b32 v2, 6, v0")
    a.e("v_lshlrev_b32 v3, 4, v1")
    a.e("v_lshl_add_u32 v3, v2, 11, v3")
    a.e("s_lshl_b32 s3, s2, 13")
    a.e("v_add_u32 v3, s3, v3")
    a.e("s_waitcnt lgkmcnt(0)")
    a.vmem("global_load_dwordx4 v[4:7], v3, s[8:9]", "x0")
    a.vmem("global_load_dwordx4 v[8:11], v3, s[8:9] offset:1024", "x1")
    ln_body(a)
    a.wait(lg="r0")
    a.vmem("global_store_dwordx4 v3, v[16:19], s[22:23]")
    a.wait(lg="r1")
    a.vmem("global_store_dwordx4 v3, v[20:23], s[22:23] offset:1024")
    a.label("L_ln_end")
    a.e("s_endpgm")
    a.vm = []
    a.lg = []


vLANE, vW, vA0, vA1, vB0, vB1, vR1, vR2, vR3, vRR, vO = 1, 2, 3, 4, 5, 6, 7, 8, 9, 10, 11
vBIAS = 12
vT = 24
vBR = 64
vACC = 192


def gen_gemm(a, which):
    g1 = which == 1
    name = "gemm%d_kernel" % which
    pitch = F * 2 if g1 else S * 2
    KW = 512 if g1 else 448
    T = KW // 16
    hrow = 1024 if g1 else 512
    prow = 512 if g1 else 1024
    a.raw(".p2align 8")
    a.raw(".type %s,@function" % name)
    a.label(name)
    end = "L_%s_end" % name
    a.e("s_cmp_ge_u32 s2, %d" % (224 if g1 else 256))
    a.e("s_cbranch_scc1 %s" % end)
    a.e("s_load_dwordx16 s[8:23], s[0:1], 0")
    a.e("v_lshrrev_b32 v2, 6, v0")
    a.e("v_and_b32 v%d, 63, v0" % vLANE)
    a.e("v_readfirstlane_b32 s%d, v2" % sWAVE)
    a.e("s_and_b32 s%d, s2, 7" % sT0)
    a.e("s_lshr_b32 s%d, s2, 3" % sT1)
    if g1:
        a.e("s_mul_i32 s%d, s%d, 37" % (sT2, sT1))
        a.e("s_lshr_b32 s%d, s%d, 8" % (sT2, sT2))
        a.e("s_mul_i32 s%d, s%d, 7" % (sT3, sT2))
        a.e("s_sub_u32 s%d, s%d, s%d" % (sT3, sT1, sT3))
        a.e("s_lshr_b32 s%d, s%d, 1" % (sTA, sT0))
        a.e("s_mul_i32 s%d, s%d, 7" % (sTA, sTA))
        a.e("s_add_u32 s%d, s%d, s%d" % (sTA, sTA, sT3))
    else:
        a.e("s_lshr_b32 s%d, s%d, 3" % (sT2, sT1))
        a.e("s_and_b32 s%d, s%d, 7" % (sT3, sT1))
        a.e("s_lshr_b32 s%d, s%d, 1" % (sTA, sT0))
        a.e("s_lshl_b32 s%d, s%d, 3" % (sTA, sTA))
        a.e("s_add_u32 s%d, s%d, s%d" % (sTA, sTA, sT3))
    a.e("s_and_b32 s%d, s%d, 1" % (sTB, sT0))
    a.e("s_lshl_b32 s%d, s%d, 2" % (sTB, sTB))
    a.e("s_add_u32 s%d, s%d, s%d" % (sTB, sTB, sT2))
    L = vLANE
    a.e("v_lshrrev_b32 v%d, 3, v%d" % (vT, L))
    a.e("v_mul_u32_u24 v%d, %d, v%d" % (vW, pitch, vT))
    a.e("v_lshrrev_b32 v%d, 2, v%d" % (vT + 1, L))
    a.e("v_and_b32 v%d, 4, v%d" % (vT + 1, vT + 1))
    a.e("v_and_b32 v%d, 7, v%d" % (vT + 2, L))
    a.e("v_xor_b32 v%d, v%d, v%d" % (vT + 2, vT + 1, vT + 2))
    a.e("v_lshl_add_u32 v%d, v%d, 4, v%d" % (vW, vT + 2, vW))
    a.e("s_mul_i32 s%d, s%d, %d" % (sSW, sWAVE, KW * pitch))
    a.e("s_lshl_b32 s%d, s%d, 7" % (sT0, sTA))
    a.e("s_add_u32 s%d, s%d, s%d" % (sSW, sSW, sT0))
    a.e("s_mul_i32 s%d, s%d, %d" % (sLW, sWAVE, RING * 2048))
    a.e("s_add_u32 s%d, s%d, %d" % (sLW, sLW, LDS_W))
    a.e("s_mul_i32 s%d, s%d, %d" % (sSB, sWAVE, (KW // 8) * 8192))
    a.e("s_lshl_b32 s%d, s%d, 10" % (sT0, sTB))
    a.e("s_add_u32 s%d, s%d, s%d" % (sSB, sSB, sT0))
    a.e("v_lshrrev_b32 v%d, 5, v%d" % (vT, L))
    a.e("v_and_b32 v%d, 31, v%d" % (vT + 1, L))
    a.e("v_lshlrev_b32 v%d, 4, v%d" % (vT + 2, vT + 1))
    a.e("v_lshl_add_u32 v%d, v%d, 13, v%d" % (vT + 2, vT, vT + 2))
    a.e("s_and_b32 s%d, s%d, 1" % (sT0, sWAVE))
    a.e("s_lshl_b32 s%d, s%d, 9" % (sT0, sT0))
    a.e("v_add_u32 v%d, s%d, v%d" % (vB0, sT0, vT + 2))
    a.e("v_xor_b32 v%d, 0x200, v%d" % (vB1, vB0))
    a.e("s_waitcnt lgkmcnt(0)")
    srd(a, RW, sW1 if g1 else sW2, 0, S * F * 2)
    srd(a, RB, sWS, H_OFF if g1 else U_OFF, H_BYTES if g1 else U_BYTES)

    def issueW(t):
        for n in (2 * t, 2 * t + 1):
            slot = n % (2 * RING)
            a.e("s_add_u32 m0, s%d, %d" % (sLW, slot * 1024))
            a.e("s_add_u32 s%d, s%d, %d" % (sT0, sSW, n * 8 * pitch))
            a.vmem("buffer_load_dwordx4 v%d, %s, s%d offen lds" % (vW, sr(RW, 4), sT0), ("W", t))

    def issueB(t):
        rb = vBR + (t % 16) * 8
        a.e("s_add_u32 s%d, s%d, %d" % (sT1, sSB, t * 16384))
        a.vmem("buffer_load_dwordx4 %s, v%d, %s, s%d offen" % (vr(rb, 4), vB0, sr(RB, 4), sT1), ("B", t))
        a.vmem("buffer_load_dwordx4 %s, v%d, %s, s%d offen" % (vr(rb + 4, 4), vB1, sr(RB, 4), sT1), ("B", t))

    for t in range(RING):
        issueW(t)
        issueB(t)

    if g1:
        srd(a, RO, sWS, U_OFF, U_BYTES)
        srd(a, RBI, sB1, 0, F * 2)
    else:
        srd(a, RO, sOUT, 0, S * D * 2)
        srd(a, RBI, sB2, 0, S * 2)
    a.e("v_lshrrev_b32 v%d, 5, v%d" % (vT, L))
    a.e("v_mul_u32_u24 v%d, %d, v%d" % (vA0, hrow, vT))
    a.e("v_bfe_u32 v%d, v%d, 2, 2" % (vT + 1, L))
    a.e("v_lshl_add_u32 v%d, v%d, 7, v%d" % (vA0, vT + 1, vA0))
    a.e("v_bfe_u32 v%d, v%d, 3, 1" % (vT + 1, L))
    a.e("s_lshr_b32 s%d, s%d, 1" % (sT0, sWAVE))
    a.e("v_xor_b32 v%d, s%d, v%d" % (vT + 1, sT0, vT + 1))
    a.e("v_lshl_add_u32 v%d, v%d, 6, v%d" % (vA0, vT + 1, vA0))
    a.e("v_bfe_u32 v%d, v%d, 4, 1" % (vT + 1, L))
    a.e("v_lshl_add_u32 v%d, v%d, 5, v%d" % (vA0, vT + 1, vA0))
    a.e("v_and_b32 v%d, 3, v%d" % (vT + 1, L))
    a.e("v_lshl_add_u32 v%d, v%d, 3, v%d" % (vA0, vT + 1, vA0))
    a.e("v_add_u32 v%d, s%d, v%d" % (vA0, sLW, vA0))
    a.e("v_xor_b32 v%d, 64, v%d" % (vA1, vA0))
    a.e("v_lshlrev_b32 v%d, 4, v%d" % (vT, L))
    for qi, reg in ((1, vR1), (2, vR2), (3, vR3)):
        a.e("s_xor_b32 s%d, s%d, %d" % (sT0, sWAVE, qi))
        a.e("s_mul_i32 s%d, s%d, %d" % (sT0, sT0, 12288))
        a.e("s_add_u32 s%d, s%d, %d" % (sT0, sT0, LDS_RED + (qi - 1) * 4096))
        a.e("v_add_u32 v%d, s%d, v%d" % (reg, sT0, vT))
    a.e("s_mul_i32 s%d, s%d, %d" % (sT0, sWAVE, 12288))
    a.e("v_add_u32 v%d, s%d, v%d" % (vRR, sT0, vT))
    if LDS_RED:
        a.e("v_add_u32 v%d, %d, v%d" % (vRR, LDS_RED, vRR))
    a.e("s_lshr_b32 s%d, s%d, 1" % (sT2, sWAVE))
    a.e("s_and_b32 s%d, s%d, 1" % (sT3, sWAVE))
    a.e("v_lshrrev_b32 v%d, 5, v%d" % (vT, L))
    a.e("v_and_b32 v%d, 31, v%d" % (vT + 1, L))
    if g1:
        a.e("s_lshl_b32 s%d, s%d, 7" % (sT0, sTA))
        a.e("s_lshl_b32 s%d, s%d, 6" % (sT1, sT2))
        a.e("s_add_u32 s%d, s%d, s%d" % (sT0, sT0, sT1))
        a.e("v_lshlrev_b32 v%d, 3, v%d" % (vT + 2, vT))
        for g in range(4):
            a.vmem("buffer_load_dwordx2 %s, v%d, %s, s%d offen offset:%d" % (vr(vBIAS + 2 * g, 2), vT + 2, sr(RBI, 4), sT0, 16 * g), "bias")
        a.e("v_lshlrev_b32 v%d, 4, v%d" % (vO, vT + 1))
        a.e("v_lshl_add_u32 v%d, v%d, 13, v%d" % (vO, vT, vO))
        a.e("s_lshl_b32 s%d, s%d, 16" % (sSO, sTA))
        a.e("s_lshl_b32 s%d, s%d, 15" % (sT0, sT2))
        a.e("s_add_u32 s%d, s%d, s%d" % (sSO, sSO, sT0))
        a.e("s_lshl_b32 s%d, s%d, 10" % (sT0, sTB))
        a.e("s_add_u32 s%d, s%d, s%d" % (sSO, sSO, sT0))
        a.e("s_lshl_b32 s%d, s%d, 9" % (sT0, sT3))
        a.e("s_add_u32 s%d, s%d, s%d" % (sSO, sSO, sT0))
    else:
        a.e("s_lshl_b32 s%d, s%d, 7" % (sT0, sTA))
        a.e("s_lshl_b32 s%d, s%d, 6" % (sT1, sT2))
        a.e("s_add_u32 s%d, s%d, s%d" % (sT0, sT0, sT1))
        a.e("v_lshlrev_b32 v%d, 1, v%d" % (vT + 2, vT + 1))
        a.vmem("buffer_load_ushort v%d, v%d, %s, s%d offen" % (vBIAS, vT + 2, sr(RBI, 4), sT0), "bias")
        a.e("v_lshlrev_b32 v%d, 10, v%d" % (vO, vT + 1))
        a.e("v_lshl_add_u32 v%d, v%d, 4, v%d" % (vO, vT, vO))
        a.e("s_lshl_b32 s%d, s%d, 16" % (sSO, sTA))
        a.e("s_lshl_b32 s%d, s%d, 15" % (sT0, sT2))
        a.e("s_add_u32 s%d, s%d, s%d" % (sSO, sSO, sT0))
        a.e("s_lshl_b32 s%d, s%d, 7" % (sT0, sTB))
        a.e("s_add_u32 s%d, s%d, s%d" % (sSO, sSO, sT0))
        a.e("s_lshl_b32 s%d, s%d, 6" % (sT0, sT3))
        a.e("s_add_u32 s%d, s%d, s%d" % (sSO, sSO, sT0))

    def trread(t):
        a.wait(vm=[("W", t)])
        base = (t % RING) * 2048
        for wh, va in ((0, vA0), (1, vA1)):
            for p in range(2):
                a.lds("ds_read_b64_tr_b16 %s, v%d offset:%d" % (ar(8 * t + 4 * wh + 2 * p, 2), va, base + p * prow), ("A", t))

    def mfma(t):
        rb = vBR + (t % 16) * 8
        order = [(0, 0), (0, 1), (1, 0), (1, 1)]
        if t == T - 1:
            order = [(0, 1), (1, 0), (1, 1), (0, 0)]
        for wh, ah in order:
            acc = vr(vACC + 16 * (2 * wh + ah), 16)
            Wf = ar(8 * t + 4 * wh, 4)
            Bf = vr(rb + 4 * ah, 4)
            c = "0" if t == 0 else acc
            if g1:
                a.e("v_mfma_f32_32x32x16_bf16 %s, %s, %s, %s" % (acc, Wf, Bf, c))
            else:
                a.e("v_mfma_f32_32x32x16_bf16 %s, %s, %s, %s" % (acc, Bf, Wf, c))

    trread(0)
    for t in range(T):
        if t + 1 < T:
            trread(t + 1)
        a.wait(vm=[("B", t)], lg=[("A", t)])
        mfma(t)
        if t + RING < T:
            issueW(t + RING)
            issueB(t + RING)

    a.e("s_nop 7")
    a.e("s_nop 1")
    for qi, reg in ((1, vR1), (2, vR2), (3, vR3)):
        for i in range(4):
            a.lds("ds_write_b128 v%d, %s offset:%d" % (reg, vr(vACC + 16 * qi + 4 * i, 4), i * 1024), "rw")
    a.wait(lg="rw")
    a.e("s_barrier")
    for s in range(3):
        for i in range(4):
            a.lds("ds_read_b128 %s, v%d offset:%d" % (vr(vBR + 16 * s + 4 * i, 4), vRR, s * 4096 + i * 1024), ("rr", s))
    a.wait(vm="bias")
    if g1:
        a.e("s_mov_b32 s%d, 0xffff0000" % sT0)
        for k in range(8):
            a.e("v_lshlrev_b32 v%d, 16, v%d" % (vT + 2 * k, vBIAS + k))
            a.e("v_and_b32 v%d, s%d, v%d" % (vT + 2 * k + 1, sT0, vBIAS + k))
        for k in range(8):
            a.e("v_pk_add_f32 %s, %s, %s" % (vr(vACC + 2 * k, 2), vr(vACC + 2 * k, 2), vr(vT + 2 * k, 2)))
    else:
        a.e("v_lshlrev_b32 v%d, 16, v%d" % (vT, vBIAS))
        a.e("v_mov_b32 v%d, v%d" % (vT + 1, vT))
        for k in range(8):
            a.e("v_pk_add_f32 %s, %s, %s" % (vr(vACC + 2 * k, 2), vr(vACC + 2 * k, 2), vr(vT, 2)))
    for s in range(3):
        a.wait(lg=[("rr", s)])
        for k in range(8):
            a.e("v_pk_add_f32 %s, %s, %s" % (vr(vACC + 2 * k, 2), vr(vACC + 2 * k, 2), vr(vBR + 16 * s + 2 * k, 2)))
    if g1:
        import math
        c0 = -2.0 * math.log2(math.e) * math.sqrt(2.0 / math.pi)
        c1 = c0 * 0.044715
        a.e("s_mov_b32 s%d, %s" % (sC0, f32(c0)))
        a.e("s_mov_b32 s%d, %s" % (sC1, f32(c1)))
        a.e("v_mov_b32 v%d, s%d" % (vT + 16, sC0))
        a.e("v_mov_b32 v%d, s%d" % (vT + 17, sC0))
        a.e("s_mov_b32 s%d, s%d" % (sC0, sC1))
        for k in range(8):
            a.e("v_pk_mul_f32 %s, %s, %s" % (vr(vT + 2 * k, 2), vr(vACC + 2 * k, 2), vr(vACC + 2 * k, 2)))
        for k in range(8):
            a.e("v_pk_fma_f32 %s, %s, %s, %s" % (vr(vT + 2 * k, 2), vr(vT + 2 * k, 2), sr(sC0, 2), vr(vT + 16, 2)))
        for k in range(8):
            a.e("v_pk_mul_f32 %s, %s, %s" % (vr(vT + 2 * k, 2), vr(vT + 2 * k, 2), vr(vACC + 2 * k, 2)))
        for k in range(16):
            a.e("v_exp_f32 v%d, v%d" % (vT + k, vT + k))
        for k in range(8):
            a.e("v_pk_add_f32 %s, %s, 1.0 op_sel_hi:[1,0]" % (vr(vT + 2 * k, 2), vr(vT + 2 * k, 2)))
        for k in range(16):
            a.e("v_rcp_f32 v%d, v%d" % (vT + k, vT + k))
        for k in range(8):
            a.e("v_pk_mul_f32 %s, %s, %s" % (vr(vT + 2 * k, 2), vr(vT + 2 * k, 2), vr(vACC + 2 * k, 2)))
        for k in range(8):
            a.e("v_cvt_pk_bf16_f32 v%d, v%d, v%d" % (vBR + k, vT + 2 * k, vT + 2 * k + 1))
        a.e("s_add_u32 s%d, s%d, 16384" % (sT0, sSO))
        a.vmem("buffer_store_dwordx4 %s, v%d, %s, s%d offen" % (vr(vBR, 4), vO, sr(RO, 4), sSO))
        a.vmem("buffer_store_dwordx4 %s, v%d, %s, s%d offen" % (vr(vBR + 4, 4), vO, sr(RO, 4), sT0))
    else:
        for k in range(8):
            a.e("v_cvt_pk_bf16_f32 v%d, v%d, v%d" % (vBR + k, vACC + 2 * k, vACC + 2 * k + 1))
        a.e("s_nop 1")
        for kp in range(2):
            a.e("v_permlane32_swap_b32 v%d, v%d" % (vBR + 4 * kp, vBR + 4 * kp + 2))
            a.e("v_permlane32_swap_b32 v%d, v%d" % (vBR + 4 * kp + 1, vBR + 4 * kp + 3))
        a.vmem("buffer_store_dwordx4 %s, v%d, %s, s%d offen" % (vr(vBR, 4), vO, sr(RO, 4), sSO))
        a.vmem("buffer_store_dwordx4 %s, v%d, %s, s%d offen offset:32" % (vr(vBR + 4, 4), vO, sr(RO, 4), sSO))
    a.label(end)
    a.e("s_endpgm")
    a.vm = []
    a.lg = []


def main(out):
    a = Asm()
    a.raw(HEADER.rstrip())
    a.raw("; @launch kernel=ln_kernel grid=(256,1,1) block=(256,1,1) lds=8192")
    a.raw("; @launch kernel=gemm1_kernel grid=(224,1,1) block=(256,1,1) lds=%d" % LDS_TOTAL)
    a.raw("; @launch kernel=gemm2_kernel grid=(256,1,1) block=(256,1,1) lds=%d" % LDS_TOTAL)
    a.raw('.amdgcn_target "amdgcn-amd-amdhsa--gfx950"')
    a.raw(".text")
    a.raw(".globl ln_kernel")
    a.raw(".globl gemm1_kernel")
    a.raw(".globl gemm2_kernel")
    gen_ln(a)
    gen_gemm(a, 1)
    gen_gemm(a, 2)
    a.raw('.section .rodata,"a"')
    a.raw(kernel_desc("ln_kernel", 40, 40, 32))
    a.raw(kernel_desc("gemm1_kernel", 512, 256, 64))
    a.raw(kernel_desc("gemm2_kernel", 512, 256, 64))
    open(out, "w").write(a.text())


if __name__ == "__main__":
    main(sys.argv[1])
```

```python
STAMP_OFF = 8 << 20
SBASE = 64


def stamp(a, i, on):
    if on:
        a.e("s_memrealtime s[%d:%d]" % (SBASE + 2 * i, SBASE + 2 * i + 1))


def stamp_flush(a, n, kid, on, sws, swave, nw=4, vt=0):
    if not on:
        return
    a.e("s_waitcnt lgkmcnt(0)")
    a.e("s_mov_b64 exec, 1")
    a.e("s_mul_i32 s96, s2, %d" % nw)
    a.e("s_add_u32 s96, s96, s%d" % swave)
    a.e("s_add_u32 s96, s96, %d" % (kid * 256 * nw))
    a.e("s_lshl_b32 s96, s96, 6")
    a.e("s_add_u32 s96, s96, 0x%x" % STAMP_OFF)
    a.e("v_mov_b32 v%d, s96" % vt)
    for i in range(n):
        a.e("v_mov_b32 v%d, s%d" % (vt + 1, SBASE + 2 * i))
        a.e("global_store_dword v%d, v%d, s[%d:%d] offset:%d" % (vt, vt + 1, sws, sws + 1, 4 * i))
        a.e("s_nop 1")
    a.e("v_mov_b32 v%d, 0x5157A3B1" % (vt + 1))
    a.e("global_store_dword v%d, v%d, s[%d:%d] offset:60" % (vt, vt + 1, sws, sws + 1))
```

```python
import sys, struct, math
from asmlib import *
from stamps import *

S, D, F = 2048, 512, 1792
NAME = "standalone__mixer_token_mlp__prompt_kernel"


def f32(x):
    return "0x%08x" % struct.unpack("<I", struct.pack("<f", x))[0]


class Cfg:
    stamp = False
    x_flags = "nt"
    w1_first = "nt"
    w1_rest = ""
    w2_idle = "nt"
    w2_busy = ""
    pre_flag_dma = 4
    bring = 8
    poll_sleep = 2
    poll_max = 20000
    out_flags = ""


H_OFF = 0
U_OFF = 2 << 20
FL_OFF = 4 << 20
H_BYTES = S * D * 2
U_BYTES = F * D * 2
F1_OFF, F2_OFF, EP_OFF = 0, 4096, 0x3000

sX, sW1, sB1, sW2, sB2, sOUT, sDBG, sWS = 8, 10, 12, 14, 16, 18, 20, 22
RW1, RW2, RH, RU, RO, RF = 24, 28, 32, 36, 40, 44
sWAVE, sFB, sDB, sSB2, sDB2, sLW, sNONCE, sIDLE = 48, 49, 50, 51, 52, 53, 54, 55
sT0, sT1, sT2, sT3 = 56, 57, 58, 59
sSW, sSBB, sSO, sG = 60, 61, 62, 63
sC0 = 4

RING = 14
LDS_RED = 0
LDS_W = 49152
LDS_TOTAL = 163840

vLANE, vW1, vW2, vB0, vB1, vR1, vR2, vR3, vRR = 40, 41, 42, 43, 44, 45, 46, 47, 48
vA0, vA1, vO, vPOLL, vPA, vBIAS2 = 49, 50, 51, 52, 53, 54
vBIAS = 56
vT = 4
vBR = 64
vACC = 192


def srd(a, r, base, off, nbytes):
    if off:
        a.e("s_add_u32 s%d, s%d, 0x%x" % (r, base, off))
        a.e("s_addc_u32 s%d, s%d, 0" % (r + 1, base + 1))
    else:
        a.e("s_mov_b32 s%d, s%d" % (r, base))
        a.e("s_mov_b32 s%d, s%d" % (r + 1, base + 1))
    a.e("s_mov_b32 s%d, 0x%x" % (r + 2, nbytes))
    a.e("s_mov_b32 s%d, 0x20000" % (r + 3))


def dpp_reduce2(a, r0, r1):
    steps = ["row_shr:1 row_mask:0xf", "row_shr:2 row_mask:0xf", "row_shr:4 row_mask:0xf",
             "row_shr:8 row_mask:0xf", "row_bcast:15 row_mask:0xa", "row_bcast:31 row_mask:0xc"]
    a.e("s_nop 1")
    for i, st in enumerate(steps):
        a.e("v_add_f32_dpp v%d, v%d, v%d %s bank_mask:0xf" % (r0, r0, r0, st))
        a.e("v_add_f32_dpp v%d, v%d, v%d %s bank_mask:0xf" % (r1, r1, r1, st))
        if i != len(steps) - 1:
            a.e("s_nop 0")


def ln_compute(a, cfg):
    P = lambda c: 16 + 2 * c
    pk = lambda r: vr(r, 2)
    a.e("s_mov_b32 s4, 0xffff0000")
    a.wait(vm=["x0", "x1"])
    stamp(a, 2, cfg.stamp)
    for i in range(4):
        a.e("v_lshlrev_b32 v%d, 16, v%d" % (P(2 * i), 4 + i))
        a.e("v_lshlrev_b32 v%d, 16, v%d" % (P(2 * i) + 1, 8 + i))
        a.e("v_and_b32 v%d, s4, v%d" % (P(2 * i + 1), 4 + i))
        a.e("v_and_b32 v%d, s4, v%d" % (P(2 * i + 1) + 1, 8 + i))
    for i in range(4):
        a.e("v_pk_add_f32 %s, %s, %s" % (pk(32 + 2 * i), pk(P(2 * i)), pk(P(2 * i + 1))))
    a.e("v_pk_add_f32 %s, %s, %s" % (pk(32), pk(32), pk(34)))
    a.e("v_pk_add_f32 %s, %s, %s" % (pk(36), pk(36), pk(38)))
    a.e("v_pk_add_f32 %s, %s, %s" % (pk(32), pk(32), pk(36)))
    dpp_reduce2(a, 32, 33)
    a.e("v_mul_f32 v32, %s, v32" % f32(1.0 / D))
    a.e("v_mul_f32 v33, %s, v33" % f32(1.0 / D))
    a.e("s_nop 0")
    a.e("v_readlane_b32 s4, v32, 63")
    a.e("v_readlane_b32 s5, v33, 63")
    a.e("s_nop 1")
    for c in range(8):
        a.e("v_pk_add_f32 %s, %s, s[4:5] neg_lo:[0,1] neg_hi:[0,1]" % (pk(P(c)), pk(P(c))))
    a.e("v_pk_mul_f32 %s, %s, %s" % (pk(32), pk(P(0)), pk(P(0))))
    a.e("v_pk_mul_f32 %s, %s, %s" % (pk(34), pk(P(1)), pk(P(1))))
    for c in range(2, 8):
        t = 32 + 2 * (c & 1)
        a.e("v_pk_fma_f32 %s, %s, %s, %s" % (pk(t), pk(P(c)), pk(P(c)), pk(t)))
    a.e("v_pk_add_f32 %s, %s, %s" % (pk(32), pk(32), pk(34)))
    dpp_reduce2(a, 32, 33)
    a.e("v_mul_f32 v32, %s, v32" % f32(1.0 / D))
    a.e("v_mul_f32 v33, %s, v33" % f32(1.0 / D))
    a.e("v_add_f32 v32, %s, v32" % f32(1e-5))
    a.e("v_add_f32 v33, %s, v33" % f32(1e-5))
    a.e("v_rsq_f32 v32, v32")
    a.e("v_rsq_f32 v33, v33")
    a.e("s_nop 0")
    a.e("v_readlane_b32 s6, v32, 63")
    a.e("v_readlane_b32 s7, v33, 63")
    a.e("s_nop 1")
    for c in range(8):
        a.e("v_pk_mul_f32 %s, %s, s[6:7]" % (pk(P(c)), pk(P(c))))
    for c in range(8):
        a.e("v_cvt_pk_bf16_f32 v%d, v%d, v%d" % (4 + c, P(c), P(c) + 1))
    a.e("ds_write_b128 v12, v[4:7]")
    a.e("ds_write_b128 v12, v[8:11] offset:16")
    a.e("s_waitcnt lgkmcnt(0)")
    a.e("s_barrier")
    a.lds("ds_read2st64_b32 v[16:17], v13 offset0:0 offset1:8", "r0")
    a.lds("ds_read2st64_b32 v[18:19], v13 offset0:16 offset1:24", "r0")
    a.lds("ds_read2st64_b32 v[20:21], v13 offset0:1 offset1:9", "r1")
    a.lds("ds_read2st64_b32 v[22:23], v13 offset0:17 offset1:25", "r1")


class Gemm:
    def __init__(self, a, cfg, which):
        self.a, self.cfg, self.which = a, cfg, which
        g1 = self.g1 = which == 1
        self.pitch = F * 2 if g1 else S * 2
        self.KW = 512 if g1 else 448
        self.T = self.KW // 16
        self.prow = 512 if g1 else 1024
        self.hrow = 1024 if g1 else 512
        self.RW = RW1 if g1 else RW2
        self.RB = RH if g1 else RU
        self.vW = vW1 if g1 else vW2
        self.nW = 0
        self.nB = 0
        self.wflags = lambda n: ""

    def issueW(self, count=1):
        a = self.a
        for _ in range(count):
            n = self.nW
            if n >= 2 * self.T:
                return
            self.nW += 1
            slot = n % (2 * RING)
            if self.g1:
                if n % 8 == 0:
                    a.e("s_add_u32 s%d, s%d, %d" % (sG, sDB, n // 8))
                    a.e("s_and_b32 s%d, s%d, 7" % (sG, sG))
                    a.e("s_mul_i32 s%d, s%d, %d" % (sG, sG, 64 * self.pitch))
                    a.e("s_add_u32 s%d, s%d, s%d" % (sG, sG, sSW))
                base, off = sG, (n % 8) * 8 * self.pitch
            else:
                base, off = sSW, n * 8 * self.pitch
            a.e("s_add_u32 m0, s%d, %d" % (sLW, slot * 1024))
            a.e("s_add_u32 s%d, s%d, %d" % (sT0, base, off))
            a.vmem("buffer_load_dwordx4 v%d, %s, s%d offen %s lds" % (self.vW, sr(self.RW, 4), sT0, self.wflags(n)),
                   ("W", self.which, n // 2))

    def issueB(self):
        a = self.a
        t = self.nB
        if t >= self.T:
            return False
        self.nB += 1
        rb = vBR + (t % self.cfg.bring) * 8
        if self.g1:
            if t % 4 == 0:
                a.e("s_add_u32 s%d, s%d, %d" % (sT2, sDB, t // 4))
                a.e("s_and_b32 s%d, s%d, 7" % (sT2, sT2))
                a.e("s_lshl_b32 s%d, s%d, 16" % (sT2, sT2))
                a.e("s_add_u32 s%d, s%d, s%d" % (sT2, sT2, sSBB))
            a.e("s_add_u32 s%d, s%d, %d" % (sT1, sT2, (t % 4) * 16384))
        else:
            a.e("s_add_u32 s%d, s%d, %d" % (sT1, sSBB, t * 16384))
        a.vmem("buffer_load_dwordx4 %s, v%d, %s, s%d offen sc1" % (vr(rb, 4), vB0, sr(self.RB, 4), sT1), ("B", self.which, t))
        a.vmem("buffer_load_dwordx4 %s, v%d, %s, s%d offen sc1" % (vr(rb + 4, 4), vB1, sr(self.RB, 4), sT1), ("B", self.which, t))
        return True

    def trread(self, t):
        a = self.a
        a.wait(vm=[("W", self.which, t)])
        base = (t % RING) * 2048
        for wh, va in ((0, vA0), (1, vA1)):
            for p in range(2):
                a.lds("ds_read_b64_tr_b16 %s, v%d offset:%d" % (ar(8 * t + 4 * wh + 2 * p, 2), va, base + p * self.prow),
                      ("A", self.which, t))

    def mfma(self, t):
        a = self.a
        rb = vBR + (t % self.cfg.bring) * 8
        order = [(0, 0), (0, 1), (1, 0), (1, 1)]
        if t == self.T - 1:
            order = [(0, 1), (1, 0), (1, 1), (0, 0)]
        for wh, ah in order:
            acc = vr(vACC + 16 * (2 * wh + ah), 16)
            Wf = ar(8 * t + 4 * wh, 4)
            Bf = vr(rb + 4 * ah, 4)
            c = "0" if t == 0 else acc
            if self.g1:
                a.e("v_mfma_f32_32x32x16_bf16 %s, %s, %s, %s" % (acc, Wf, Bf, c))
            else:
                a.e("v_mfma_f32_32x32x16_bf16 %s, %s, %s, %s" % (acc, Bf, Wf, c))

    def setup_A(self):
        a, L = self.a, vLANE
        a.e("v_lshrrev_b32 v%d, 5, v%d" % (vT, L))
        a.e("v_mul_u32_u24 v%d, %d, v%d" % (vA0, self.hrow, vT))
        a.e("v_bfe_u32 v%d, v%d, 2, 2" % (vT + 1, L))
        a.e("v_lshl_add_u32 v%d, v%d, 7, v%d" % (vA0, vT + 1, vA0))
        a.e("v_bfe_u32 v%d, v%d, 3, 1" % (vT + 1, L))
        a.e("s_lshr_b32 s%d, s%d, 1" % (sT3, sWAVE))
        a.e("v_xor_b32 v%d, s%d, v%d" % (vT + 1, sT3, vT + 1))
        a.e("v_lshl_add_u32 v%d, v%d, 6, v%d" % (vA0, vT + 1, vA0))
        a.e("v_bfe_u32 v%d, v%d, 4, 1" % (vT + 1, L))
        a.e("v_lshl_add_u32 v%d, v%d, 5, v%d" % (vA0, vT + 1, vA0))
        a.e("v_and_b32 v%d, 3, v%d" % (vT + 1, L))
        a.e("v_lshl_add_u32 v%d, v%d, 3, v%d" % (vA0, vT + 1, vA0))
        a.e("v_add_u32 v%d, s%d, v%d" % (vA0, sLW, vA0))
        a.e("v_xor_b32 v%d, 64, v%d" % (vA1, vA0))

    def w_pipeline(self, t0, t1, hook=None):
        a = self.a
        for t in range(t0, t1):
            self.trread(t)
            if t >= 1 and self.nW < 2 * self.T and self.nW <= 2 * (t - 1 + RING):
                a.wait(lg=[("A", self.which, t - 1)])
                while self.nW < 2 * self.T and self.nW < 2 * (t - 1 + RING) + 2:
                    self.issueW(1)
            if hook:
                hook(t)


def poll_issue(a, tag):
    a.vmem("buffer_load_dword v%d, v%d, %s, 0 offen sc1" % (vPOLL, vPA, sr(RF, 4)), tag)


def poll_check(a, cfg, tag):
    ok = a.newlabel("ok")
    loop = a.newlabel("spin")
    a.wait(vm=[tag])
    a.e("v_cmp_ne_u32 vcc, s%d, v%d" % (sNONCE, vPOLL))
    a.e("s_cbranch_vccz %s" % ok)
    a.e("s_mov_b32 s%d, %d" % (sT3, cfg.poll_max))
    a.label(loop)
    if cfg.poll_sleep:
        a.e("s_sleep %d" % cfg.poll_sleep)
    a.e("buffer_load_dword v%d, v%d, %s, 0 offen sc1" % (vPOLL, vPA, sr(RF, 4)))
    a.e("s_sub_u32 s%d, s%d, 1" % (sT3, sT3))
    a.e("s_cbranch_scc1 %s" % ok)
    a.e("s_waitcnt vmcnt(0)")
    a.e("v_cmp_ne_u32 vcc, s%d, v%d" % (sNONCE, vPOLL))
    a.e("s_cbranch_vccnz %s" % loop)
    a.label(ok)


def reduction(a, filler=None):
    a.e("s_nop 7")
    a.e("s_nop 1")
    for qi, reg in ((1, vR1), (2, vR2), (3, vR3)):
        for i in range(4):
            a.lds("ds_write_b128 v%d, %s offset:%d" % (reg, vr(vACC + 16 * qi + 4 * i, 4), i * 1024), "rw")
        if filler:
            filler()
    a.wait(lg="rw")
    a.e("s_barrier")
    for s in range(3):
        for i in range(4):
            a.lds("ds_read_b128 %s, v%d offset:%d" % (vr(vBR + 16 * s + 4 * i, 4), vRR, s * 4096 + i * 1024), ("rr", s))


def reduction_add(a):
    for s in range(3):
        a.wait(lg=[("rr", s)])
        for k in range(8):
            a.e("v_pk_add_f32 %s, %s, %s" % (vr(vACC + 2 * k, 2), vr(vACC + 2 * k, 2), vr(vBR + 16 * s + 2 * k, 2)))


def gen(out, cfg):
    a = Asm()
    ST = cfg.stamp
    a.raw(HEADER.rstrip())
    a.raw("; @launch grid=(256,1,1) block=(256,1,1) lds=%d" % LDS_TOTAL)
    a.raw('.amdgcn_target "amdgcn-amd-amdhsa--gfx950"')
    a.raw(".text")
    a.raw(".globl " + NAME)
    a.raw(".p2align 8")
    a.raw(".type %s,@function" % NAME)
    a.label(NAME)
    g1 = Gemm(a, cfg, 1)
    g2 = Gemm(a, cfg, 2)
    L = vLANE
    a.e("s_load_dwordx16 s[8:23], s[0:1], 0")
    a.e("s_cmp_ge_u32 s2, 256")
    a.e("s_cbranch_scc1 L_end")
    stamp(a, 0, ST)
    a.e("v_lshrrev_b32 v2, 6, v0")
    a.e("v_and_b32 v%d, 63, v0" % L)
    a.e("v_readfirstlane_b32 s%d, v2" % sWAVE)
    a.e("v_lshlrev_b32 v3, 4, v%d" % L)
    a.e("v_lshl_add_u32 v3, v2, 11, v3")
    a.e("s_lshl_b32 s3, s2, 13")
    a.e("v_add_u32 v3, s3, v3")
    a.e("s_and_b32 s%d, s2, 7" % sT0)
    a.e("s_lshr_b32 s%d, s2, 3" % sT1)
    a.e("s_lshr_b32 s%d, s%d, 2" % (sDB, sT1))
    a.e("s_and_b32 s%d, s%d, 3" % (sT2, sT1))
    a.e("s_lshr_b32 s%d, s%d, 1" % (sFB, sT0))
    a.e("s_mul_i32 s%d, s%d, 7" % (sFB, sFB))
    a.e("s_and_b32 s%d, s%d, 1" % (sT3, sT0))
    a.e("s_mul_i32 s%d, s%d, 3" % (sIDLE, sT3))
    a.e("s_add_u32 s%d, s%d, s%d" % (sIDLE, sIDLE, sT2))
    a.e("s_add_u32 s%d, s%d, s%d" % (sFB, sFB, sIDLE))
    a.e("s_cmp_eq_u32 s%d, 3" % sIDLE)
    a.e("s_cselect_b32 s%d, 1, 0" % sIDLE)
    a.e("s_lshr_b32 s%d, s%d, 2" % (sSO, sDB))
    a.e("s_xor_b32 s%d, s%d, s%d" % (sSO, sSO, sT3))
    a.e("s_and_b32 s%d, s%d, s%d" % (sIDLE, sIDLE, sSO))
    a.e("s_lshl_b32 s%d, s%d, 2" % (sSB2, sT0))
    a.e("s_and_b32 s%d, s%d, 3" % (sT3, sDB))
    a.e("s_add_u32 s%d, s%d, s%d" % (sSB2, sSB2, sT3))
    a.e("s_and_b32 s%d, s%d, 4" % (sDB2, sDB))
    a.e("s_add_u32 s%d, s%d, s%d" % (sDB2, sDB2, sT2))
    a.e("v_lshrrev_b32 v%d, 3, v%d" % (vT + 20, L))
    a.e("v_lshrrev_b32 v%d, 2, v%d" % (vT + 21, L))
    a.e("v_and_b32 v%d, 4, v%d" % (vT + 21, vT + 21))
    a.e("v_and_b32 v%d, 7, v%d" % (vT + 22, L))
    a.e("v_xor_b32 v%d, v%d, v%d" % (vT + 22, vT + 21, vT + 22))
    a.e("v_lshlrev_b32 v%d, 4, v%d" % (vT + 22, vT + 22))
    a.e("v_mul_u32_u24 v%d, %d, v%d" % (vW1, g1.pitch, vT + 20))
    a.e("v_add_u32 v%d, v%d, v%d" % (vW1, vW1, vT + 22))
    a.e("v_lshl_add_u32 v%d, v%d, 12, v%d" % (vW2, vT + 20, vT + 22))
    a.e("s_mul_i32 s%d, s%d, %d" % (sSW, sWAVE, g1.KW * g1.pitch))
    a.e("s_lshl_b32 s%d, s%d, 7" % (sT0, sFB))
    a.e("s_add_u32 s%d, s%d, s%d" % (sSW, sSW, sT0))
    a.e("s_mul_i32 s%d, s%d, %d" % (sLW, sWAVE, RING * 2048))
    a.e("s_add_u32 s%d, s%d, %d" % (sLW, sLW, LDS_W))
    a.e("s_waitcnt lgkmcnt(0)")
    stamp(a, 1, ST)
    a.vmem("global_load_dwordx4 v[4:7], v3, s[8:9] %s" % cfg.x_flags, "x0")
    a.vmem("global_load_dwordx4 v[8:11], v3, s[8:9] offset:1024 %s" % cfg.x_flags, "x1")
    srd(a, RW1, sW1, 0, S * F * 2)
    g1.wflags = lambda n: cfg.w1_first if n < 8 else cfg.w1_rest
    g1.issueW(8)
    srd(a, RF, sWS, FL_OFF, 0x4000)
    a.e("s_load_dword s%d, s[%d:%d], 0x%x" % (sNONCE, RF, RF + 1, EP_OFF))
    srd(a, RH, sWS, H_OFF, H_BYTES)
    srd(a, RU, sWS, U_OFF, U_BYTES)
    srd(a, RW2, sW2, 0, S * F * 2)
    srd(a, RO, sOUT, 0, S * D * 2)
    a.e("v_lshlrev_b32 v12, 5, v0")
    a.e("v_lshlrev_b32 v13, 9, v2")
    a.e("v_lshl_add_u32 v13, v%d, 2, v13" % L)
    a.e("v_lshrrev_b32 v%d, 5, v%d" % (vT + 20, L))
    a.e("v_and_b32 v%d, 31, v%d" % (vT + 21, L))
    a.e("v_lshlrev_b32 v%d, 4, v%d" % (vT + 22, vT + 21))
    a.e("v_lshl_add_u32 v%d, v%d, 13, v%d" % (vO, vT + 20, vT + 22))
    a.e("s_and_b32 s%d, s%d, 1" % (sT0, sWAVE))
    a.e("s_lshl_b32 s%d, s%d, 9" % (sT0, sT0))
    a.e("v_add_u32 v%d, s%d, v%d" % (vB0, sT0, vO))
    a.e("v_xor_b32 v%d, 0x200, v%d" % (vB1, vB0))
    a.e("v_lshlrev_b32 v%d, 4, v%d" % (vT + 22, L))
    for qi, reg in ((1, vR1), (2, vR2), (3, vR3)):
        a.e("s_xor_b32 s%d, s%d, %d" % (sT0, sWAVE, qi))
        a.e("s_mul_i32 s%d, s%d, %d" % (sT0, sT0, 12288))
        a.e("s_add_u32 s%d, s%d, %d" % (sT0, sT0, LDS_RED + (qi - 1) * 4096))
        a.e("v_add_u32 v%d, s%d, v%d" % (reg, sT0, vT + 22))
    a.e("s_mul_i32 s%d, s%d, %d" % (sT0, sWAVE, 12288))
    a.e("v_add_u32 v%d, s%d, v%d" % (vRR, sT0, vT + 22))
    a.e("s_lshr_b32 s%d, s%d, 1" % (sT2, sWAVE))
    a.e("s_lshl_b32 s%d, s%d, 6" % (sT2, sT2))
    a.e("s_lshl_b32 s%d, s%d, 7" % (sT0, sFB))
    a.e("s_add_u32 s%d, s%d, s%d" % (sT0, sT0, sT2))
    a.e("v_lshl_add_u32 v%d, v%d, 3, s%d" % (vT + 22, vT + 20, sT0))
    for g in range(4):
        a.vmem("global_load_dwordx2 %s, v%d, s[%d:%d] offset:%d" % (vr(vBIAS + 2 * g, 2), vT + 22, sB1, sB1 + 1, 16 * g), "bias")
    a.e("s_lshl_b32 s%d, s%d, 7" % (sT0, sSB2))
    a.e("s_add_u32 s%d, s%d, s%d" % (sT0, sT0, sT2))
    a.e("v_lshl_add_u32 v%d, v%d, 1, s%d" % (vT + 23, vT + 21, sT0))
    a.vmem("global_load_ushort v%d, v%d, s[%d:%d]" % (vBIAS2, vT + 23, sB2, sB2 + 1), "bias")

    ln_compute(a, cfg)
    a.e("s_mul_i32 s%d, s%d, 0x9E3779B1" % (sNONCE, sNONCE))
    a.e("s_add_u32 s%d, s%d, 0x7F4A7C15" % (sNONCE, sNONCE))
    a.wait(lg="r0")
    a.vmem("buffer_store_dwordx4 v[16:19], v3, %s, 0 offen sc1" % sr(RH, 4), "hs")
    a.wait(lg="r1")
    a.vmem("buffer_store_dwordx4 v[20:23], v3, %s, 0 offen offset:1024 sc1" % sr(RH, 4), "hs")
    stamp(a, 3, ST)
    a.e("s_barrier")
    a.e("s_lshl_b32 s%d, s%d, 10" % (sT1, sWAVE))
    a.e("s_lshl_b32 s%d, s2, 2" % sT2)
    a.e("s_add_u32 s%d, s%d, s%d" % (sT1, sT1, sT2))
    a.e("v_mov_b32 v%d, s%d" % (vT + 20, sNONCE))
    a.e("s_cmp_lg_u32 s%d, 0" % sIDLE)
    a.e("s_cbranch_scc1 L_idle")
    saved_vm = list(a.vm)

    g1.issueW(cfg.pre_flag_dma)
    g1.setup_A()
    a.wait(vm="hs")
    stamp(a, 4, ST)
    a.e("s_mov_b64 exec, 1")
    a.vmem("buffer_store_dword v%d, off, %s, s%d sc1" % (vT + 20, sr(RF, 4), sT1), "f1")
    a.e("s_mov_b64 exec, -1")
    g1.issueW(2 * RING - g1.nW)
    a.e("s_lshr_b32 s%d, s%d, 1" % (sT1, sDB))
    a.e("s_lshl_b32 s%d, s%d, 10" % (sT1, sT1))
    a.e("s_lshl_b32 s%d, s%d, 8" % (sT2, sWAVE))
    a.e("s_add_u32 s%d, s%d, s%d" % (sT1, sT1, sT2))
    a.e("v_lshl_add_u32 v%d, v%d, 2, s%d" % (vPA, L, sT1))
    a.e("s_lshl_b32 s%d, s%d, 19" % (sSBB, sWAVE))
    a.e("s_lshl_b32 s%d, s%d, 10" % (sT1, sDB))
    a.e("s_add_u32 s%d, s%d, s%d" % (sSBB, sSBB, sT1))

    state = {"polled": False}

    def hook1(t):
        if not state["polled"] and g1.nW >= 2 * g1.T - 8:
            poll_issue(a, "p1")
            state["polled"] = True
    t = 0
    while g1.nW < 2 * g1.T:
        g1.w_pipeline(t, t + 1, hook1)
        t += 1
    tp = g1.T - 4
    g1.w_pipeline(t, tp)
    stamp(a, 5, ST)
    poll_check(a, cfg, "p1")
    stamp(a, 6, ST)
    for _ in range(cfg.bring - 1):
        g1.issueB()
    g1.w_pipeline(tp, g1.T)
    a.e("s_mul_i32 s%d, s%d, %d" % (sSW, sWAVE, g2.KW * g2.pitch))
    a.e("s_lshl_b32 s%d, s%d, 7" % (sT0, sSB2))
    a.e("s_add_u32 s%d, s%d, s%d" % (sSW, sSW, sT0))
    g2.wflags = lambda n: cfg.w2_busy
    a.wait(lg=[("A", 1, g1.T - 1)])
    for t in range(g1.T):
        if not g1.issueB():
            g2.issueW(2)
        a.wait(vm=[("B", 1, t)])
        if t == 0:
            stamp(a, 7, ST)
        g1.mfma(t)
    stamp(a, 8, ST)
    reduction(a, lambda: g2.issueW(1))
    a.wait(vm="bias")
    a.e("s_mov_b32 s%d, 0xffff0000" % sT3)
    for k in range(8):
        a.e("v_lshlrev_b32 v%d, 16, v%d" % (vT + 2 * k, vBIAS + k))
        a.e("v_and_b32 v%d, s%d, v%d" % (vT + 2 * k + 1, sT3, vBIAS + k))
    for k in range(8):
        a.e("v_pk_add_f32 %s, %s, %s" % (vr(vACC + 2 * k, 2), vr(vACC + 2 * k, 2), vr(vT + 2 * k, 2)))
    g2.issueW(1)
    reduction_add(a)
    a.e("s_barrier")
    g2.issueW(1)
    c0 = -2.0 * math.log2(math.e) * math.sqrt(2.0 / math.pi)
    c1 = c0 * 0.044715
    a.e("s_mov_b32 s4, %s" % f32(c1))
    a.e("s_mov_b32 s5, %s" % f32(c1))
    a.e("v_mov_b32 v%d, %s" % (vT + 16, f32(c0)))
    a.e("v_mov_b32 v%d, %s" % (vT + 17, f32(c0)))
    for k in range(8):
        a.e("v_pk_mul_f32 %s, %s, %s" % (vr(vT + 2 * k, 2), vr(vACC + 2 * k, 2), vr(vACC + 2 * k, 2)))
    for k in range(8):
        a.e("v_pk_fma_f32 %s, %s, s[4:5], %s" % (vr(vT + 2 * k, 2), vr(vT + 2 * k, 2), vr(vT + 16, 2)))
    g2.issueW(1)
    for k in range(8):
        a.e("v_pk_mul_f32 %s, %s, %s" % (vr(vT + 2 * k, 2), vr(vT + 2 * k, 2), vr(vACC + 2 * k, 2)))
    for k in range(16):
        a.e("v_exp_f32 v%d, v%d" % (vT + k, vT + k))
    g2.issueW(1)
    for k in range(8):
        a.e("v_pk_add_f32 %s, %s, 1.0 op_sel_hi:[1,0]" % (vr(vT + 2 * k, 2), vr(vT + 2 * k, 2)))
    for k in range(16):
        a.e("v_rcp_f32 v%d, v%d" % (vT + k, vT + k))
    a.e("s_lshl_b32 s%d, s%d, 16" % (sSO, sFB))
    a.e("s_lshr_b32 s%d, s%d, 1" % (sT1, sWAVE))
    a.e("s_lshl_b32 s%d, s%d, 15" % (sT1, sT1))
    a.e("s_add_u32 s%d, s%d, s%d" % (sSO, sSO, sT1))
    a.e("s_lshl_b32 s%d, s%d, 10" % (sT1, sDB))
    a.e("s_add_u32 s%d, s%d, s%d" % (sSO, sSO, sT1))
    a.e("s_and_b32 s%d, s%d, 1" % (sT1, sWAVE))
    a.e("s_lshl_b32 s%d, s%d, 9" % (sT1, sT1))
    a.e("s_add_u32 s%d, s%d, s%d" % (sSO, sSO, sT1))
    a.e("s_add_u32 s%d, s%d, 16384" % (sT2, sSO))
    for k in range(8):
        a.e("v_pk_mul_f32 %s, %s, %s" % (vr(vT + 2 * k, 2), vr(vT + 2 * k, 2), vr(vACC + 2 * k, 2)))
    for k in range(8):
        a.e("v_cvt_pk_bf16_f32 v%d, v%d, v%d" % (vBR + k, vT + 2 * k, vT + 2 * k + 1))
    a.vmem("buffer_store_dwordx4 %s, v%d, %s, s%d offen sc1" % (vr(vBR, 4), vO, sr(RU, 4), sSO), "us")
    a.vmem("buffer_store_dwordx4 %s, v%d, %s, s%d offen sc1" % (vr(vBR + 4, 4), vO, sr(RU, 4), sT2), "us")
    stamp(a, 9, ST)
    g2.issueW(2 * RING - g2.nW)
    a.e("s_lshl_b32 s%d, s%d, 9" % (sT1, sDB))
    a.e("s_lshl_b32 s%d, s%d, 4" % (sT2, sFB))
    a.e("s_add_u32 s%d, s%d, s%d" % (sT1, sT1, sT2))
    a.e("s_lshl_b32 s%d, s%d, 2" % (sT2, sWAVE))
    a.e("s_add_u32 s%d, s%d, s%d" % (sT1, sT1, sT2))
    a.e("s_add_u32 s%d, s%d, %d" % (sT1, sT1, F2_OFF))
    a.e("v_mov_b32 v%d, s%d" % (vT + 20, sNONCE))
    a.wait(vm="us")
    stamp(a, 10, ST)
    a.e("s_mov_b64 exec, 1")
    a.vmem("buffer_store_dword v%d, off, %s, s%d sc1" % (vT + 20, sr(RF, 4), sT1), "f2")
    a.e("s_or_b32 s%d, s2, s%d" % (sT2, sWAVE))
    a.e("s_cmp_lg_u32 s%d, 0" % sT2)
    a.e("s_cbranch_scc1 L_noep")
    a.e("s_movk_i32 s%d, 0x%x" % (sT2, EP_OFF))
    a.e("buffer_store_dword v%d, off, %s, s%d sc1" % (vT + 20, sr(RF, 4), sT2))
    a.e("s_waitcnt vmcnt(0)")
    a.label("L_noep")
    a.e("s_mov_b64 exec, -1")
    a.e("s_branch L_join")
    busy_vm = list(a.vm)
    nW2 = g2.nW

    a.label("L_idle")
    a.vm = saved_vm
    a.e("s_mul_i32 s%d, s%d, %d" % (sSW, sWAVE, g2.KW * g2.pitch))
    a.e("s_lshl_b32 s%d, s%d, 7" % (sT0, sSB2))
    a.e("s_add_u32 s%d, s%d, s%d" % (sSW, sSW, sT0))
    a.wait(vm="hs")
    stamp(a, 4, ST)
    a.e("s_mov_b64 exec, 1")
    a.vmem("buffer_store_dword v%d, off, %s, s%d sc1" % (vT + 20, sr(RF, 4), sT1), "f1")
    a.e("s_mov_b64 exec, -1")
    g2.nW = 2 * RING
    g2.wflags = lambda n: cfg.w2_idle
    g2.issueW(2 * RING)
    a.wait_all(lg=False)
    g2.nW = 0
    g2.issueW(2 * RING)
    for i in (5, 6, 7, 8, 9, 10):
        stamp(a, i, ST)
    a.wait_all(lg=False)
    assert g2.nW == nW2
    a.vm = busy_vm
    g2.wflags = lambda n: cfg.w2_busy

    a.label("L_join")
    g2.setup_A()
    a.e("s_lshl_b32 s%d, s%d, 9" % (sT1, sDB2))
    a.e("s_mul_i32 s%d, s%d, 112" % (sT2, sWAVE))
    a.e("s_add_u32 s%d, s%d, s%d" % (sT1, sT1, sT2))
    a.e("s_add_u32 s%d, s%d, %d" % (sT1, sT1, F2_OFF))
    a.e("v_min_u32 v%d, 27, v%d" % (vPA, L))
    a.e("v_lshl_add_u32 v%d, v%d, 2, s%d" % (vPA, vPA, sT1))
    a.e("s_mul_i32 s%d, s%d, %d" % (sSBB, sWAVE, 56 * 8192))
    a.e("s_lshl_b32 s%d, s%d, 10" % (sT1, sDB2))
    a.e("s_add_u32 s%d, s%d, s%d" % (sSBB, sSBB, sT1))
    state["polled"] = False

    def hook2(t):
        if not state["polled"] and g2.nW >= 2 * g2.T - 8:
            poll_issue(a, "p2")
            state["polled"] = True
    t = 0
    while g2.nW < 2 * g2.T:
        g2.w_pipeline(t, t + 1, hook2)
        t += 1
    tp = g2.T - 4
    g2.w_pipeline(t, tp)
    stamp(a, 11, ST)
    poll_check(a, cfg, "p2")
    stamp(a, 12, ST)
    for _ in range(cfg.bring - 1):
        g2.issueB()
    g2.w_pipeline(tp, g2.T)
    a.e("v_lshrrev_b32 v%d, 5, v%d" % (vT, L))
    a.e("v_and_b32 v%d, 31, v%d" % (vT + 1, L))
    a.e("v_lshlrev_b32 v%d, 10, v%d" % (vO, vT + 1))
    a.e("v_lshl_add_u32 v%d, v%d, 4, v%d" % (vO, vT, vO))
    a.e("s_lshl_b32 s%d, s%d, 16" % (sSO, sSB2))
    a.e("s_lshr_b32 s%d, s%d, 1" % (sT0, sWAVE))
    a.e("s_lshl_b32 s%d, s%d, 15" % (sT0, sT0))
    a.e("s_add_u32 s%d, s%d, s%d" % (sSO, sSO, sT0))
    a.e("s_lshl_b32 s%d, s%d, 7" % (sT0, sDB2))
    a.e("s_add_u32 s%d, s%d, s%d" % (sSO, sSO, sT0))
    a.e("s_and_b32 s%d, s%d, 1" % (sT0, sWAVE))
    a.e("s_lshl_b32 s%d, s%d, 6" % (sT0, sT0))
    a.e("s_add_u32 s%d, s%d, s%d" % (sSO, sSO, sT0))
    a.wait(lg=[("A", 2, g2.T - 1)])
    for t in range(g2.T):
        g2.issueB()
        a.wait(vm=[("B", 2, t)])
        g2.mfma(t)
    stamp(a, 13, ST)
    reduction(a)
    a.e("v_lshlrev_b32 v%d, 16, v%d" % (vT, vBIAS2))
    a.e("v_mov_b32 v%d, v%d" % (vT + 1, vT))
    for k in range(8):
        a.e("v_pk_add_f32 %s, %s, %s" % (vr(vACC + 2 * k, 2), vr(vACC + 2 * k, 2), vr(vT, 2)))
    reduction_add(a)
    for k in range(8):
        a.e("v_cvt_pk_bf16_f32 v%d, v%d, v%d" % (vBR + k, vACC + 2 * k, vACC + 2 * k + 1))
    a.e("s_nop 1")
    for kp in range(2):
        a.e("v_permlane32_swap_b32 v%d, v%d" % (vBR + 4 * kp, vBR + 4 * kp + 2))
        a.e("v_permlane32_swap_b32 v%d, v%d" % (vBR + 4 * kp + 1, vBR + 4 * kp + 3))
    a.vmem("buffer_store_dwordx4 %s, v%d, %s, s%d offen %s" % (vr(vBR, 4), vO, sr(RO, 4), sSO, cfg.out_flags))
    a.vmem("buffer_store_dwordx4 %s, v%d, %s, s%d offen offset:32 %s" % (vr(vBR + 4, 4), vO, sr(RO, 4), sSO, cfg.out_flags))
    if ST:
        a.e("s_waitcnt vmcnt(0)")
    stamp(a, 14, ST)
    stamp_flush(a, 15, 0, ST, sWS, sWAVE)
    a.label("L_end")
    a.e("s_endpgm")
    a.raw('.section .rodata,"a"')
    a.raw(kernel_desc(NAME, 512, 256, 102))
    open(out, "w").write(a.text())


if __name__ == "__main__":
    cfg = Cfg()
    for kv in sys.argv[2:]:
        k, v = kv.split("=", 1)
        old = getattr(cfg, k)
        if isinstance(old, bool):
            v = v in ("1", "true", "True")
        elif isinstance(old, int):
            v = int(v)
        setattr(cfg, k, v)
    gen(sys.argv[1], cfg)
```

```python
import sys
from asmlib import *
NAME = "standalone__mixer_token_mlp__prompt_kernel"


def spin_kernel(i, stat, M, nwaves=1024):
    a = Asm()
    a.raw(".p2align 8")
    a.raw(".globl spin_kernel")
    a.raw(".type spin_kernel,@function")
    a.label("spin_kernel")
    a.e("s_cmp_lg_u32 s2, 0")
    a.e("s_cbranch_scc1 L_spin_end")
    a.e("s_load_dwordx2 s[4:5], s[0:1], 56")
    a.e("v_lshlrev_b32 v1, 6, v0")
    a.e("v_add_u32 v1, 0x800000, v1")
    a.e("v_mov_b32 v10, -1")
    a.e("v_mov_b32 v11, 0")
    a.e("s_waitcnt lgkmcnt(0)")
    a.e("global_load_dword v2, v1, s[4:5]")
    a.e("s_waitcnt vmcnt(0)")
    a.e("v_readfirstlane_b32 s6, v2")
    a.e("s_sub_u32 s6, s6, 1000")
    for k in range(nwaves // 64):
        a.e("global_load_dword v2, v1, s[4:5]")
        a.e("global_load_dword v3, v1, s[4:5] offset:%d" % (4 * i))
        a.e("s_waitcnt vmcnt(0)")
        a.e("v_subrev_u32 v2, s6, v2")
        a.e("v_subrev_u32 v3, s6, v3")
        a.e("v_min_u32 v10, v10, v2")
        if stat == "max":
            a.e("v_max_u32 v11, v11, v3")
        else:
            a.e("v_add_u32 v11, v11, v3")
        a.e("v_add_u32 v1, 0x1000, v1")
    a.e("s_mov_b32 s7, -1")
    a.e("s_mov_b32 s8, 0")
    a.e("s_nop 1")
    for l in range(64):
        a.e("v_readlane_b32 s9, v10, %d" % l)
        a.e("v_readlane_b32 s10, v11, %d" % l)
        a.e("s_nop 0")
        a.e("s_min_u32 s7, s7, s9")
        if stat == "max":
            a.e("s_max_u32 s8, s8, s10")
        else:
            a.e("s_add_u32 s8, s8, s10")
    if stat != "max":
        a.e("s_lshr_b32 s8, s8, %d" % (nwaves.bit_length() - 1))
    a.e("s_sub_u32 s8, s8, s7")
    a.e("s_min_u32 s8, s8, 10000")
    a.e("s_mul_i32 s8, s8, %d" % M)
    a.e("s_memrealtime s[12:13]")
    a.e("s_waitcnt lgkmcnt(0)")
    a.label("L_spin")
    a.e("s_memrealtime s[14:15]")
    a.e("s_waitcnt lgkmcnt(0)")
    a.e("s_sub_u32 s16, s14, s12")
    a.e("s_cmp_lt_u32 s16, s8")
    a.e("s_cbranch_scc1 L_spin")
    a.label("L_spin_end")
    a.e("s_endpgm")
    return a.text()


def make(src, out, i, stat, M):
    lines = open(src).read().split("\n")
    res = []
    for l in lines:
        if l.startswith("; @launch grid="):
            res.append(l.replace("; @launch grid=", "; @launch kernel=%s grid=" % NAME))
            res.append("; @launch kernel=spin_kernel grid=(1,1,1) block=(64,1,1) lds=0")
            continue
        if l.startswith(".section .rodata"):
            res.append(spin_kernel(i, stat, M))
        res.append(l)
    res.append(kernel_desc("spin_kernel", 16, 16, 32))
    open(out, "w").write("\n".join(res))


if __name__ == "__main__":
    src = sys.argv[1]
    for spec in sys.argv[2:]:
        i, stat, M = spec.split(",")
        make(src, "p_%s_%s_%s.s" % (i, stat, M), int(i), stat, int(M))
```

```python
import sys, re
from asmlib import *
from probe import spin_kernel
NAME = "standalone__mixer_token_mlp__prompt_kernel"


def body(path):
    t = open(path).read()
    launch = [l for l in t.split("\n") if l.startswith("; @launch grid=")][0]
    s = t.index(".text") + len(".text")
    e = t.index('.section .rodata')
    return launch, t[s:e], t[e + len('.section .rodata,"a"'):]


def make(mb, good, out, i, stat, M):
    l1, c1, d1 = body(mb)
    l2, c2, d2 = body(good)
    c1 = c1.replace(NAME, "mb_kernel")
    d1 = d1.replace(NAME, "mb_kernel")
    c1 = re.sub(r"\bL_(\w+)", r"LM_\1", c1)
    res = [HEADER.rstrip(),
           l1.replace("; @launch grid=", "; @launch kernel=mb_kernel grid="),
           "; @launch kernel=spin_kernel grid=(1,1,1) block=(64,1,1) lds=0",
           l2.replace("; @launch grid=", "; @launch kernel=%s grid=" % NAME),
           '.amdgcn_target "amdgcn-amd-amdhsa--gfx950"', ".text", c1, spin_kernel(i, stat, M), c2,
           '.section .rodata,"a"', d1, d2, kernel_desc("spin_kernel", 16, 16, 32)]
    open(out, "w").write("\n".join(res))


if __name__ == "__main__":
    good = "f1_nont.s"
    for spec in sys.argv[1:]:
        mb, i, stat, M = spec.split(",")
        make("var/%s.s" % mb, good, "q_%s_%s_%s_%s.s" % (mb, i, stat, M), int(i), stat, int(M))
```
